```python
import torch

def _softmax(x, axis=-1):
    return torch.softmax(x, dim=axis)
def _gelu(x):
    return torch.nn.functional.gelu(x, approximate="tanh")
def _silu(x):
    return torch.nn.functional.silu(x)
def _sigmoid(x):
    return torch.sigmoid(x)
def _layernorm(x, axis=-1, eps=1e-5):
    m = x.mean(dim=axis, keepdim=True)
    v = x.var(dim=axis, keepdim=True, unbiased=False)
    return (x - m) / torch.sqrt(v + eps)
def _scatter_add(tgt, idx, src, axis=0):
    return tgt.clone().index_add_(axis, idx, src)
def _segment_sum(src, seg, n):
    out = torch.zeros((n,) + src.shape[1:], dtype=src.dtype)
    return out.index_add_(0, seg, src)
def _pad(x, pw):
    flat = tuple(v for pair in reversed(pw) for v in pair)
    return torch.nn.functional.pad(x, flat)

kernel_name = 'gated_mix__compressed_kv_cla__dense_activation_squared_relu__decode'

def setup_inputs():

    _w = (lambda a: (lambda t: t.to(torch.bfloat16) if t.is_floating_point() else t)(torch.as_tensor(a)))
    def _A_setup():
        B, H, Sq, Sk, D, M = 2, 32, 1, 8192, 128, 576
        Dc = 4 * D
        return {
            "x": _w((lambda *s: torch.randn(*s, dtype=torch.bfloat16) * 0.05)(B, Sq, M)),
            "c_kv": _w((lambda *s: torch.randn(*s, dtype=torch.bfloat16) * 1.6)(B, Sk, Dc)),
            "w_q": _w((lambda *s: torch.randn(*s, dtype=torch.bfloat16) * 6.4)(M, H, D) * (M ** -0.5)),
            "w_uk": _w((lambda *s: torch.randn(*s, dtype=torch.bfloat16) * 6.4)(Dc, H, D) * (Dc ** -0.5)),
            "w_uv": _w((lambda *s: torch.randn(*s, dtype=torch.bfloat16) * 1.6)(Dc, H, D) * (Dc ** -0.5)),
            "w_o": _w((lambda *s: torch.randn(*s, dtype=torch.bfloat16) * 1.6)(H, D, M) * ((H * D) ** -0.5)),
        }
    _A_in = _A_setup()

    def _B_setup():
        B, S, D, F = 2, 1, 576, 4608
        return {
            "x": _w((lambda *s: torch.randn(*s, dtype=torch.bfloat16) * 0.05)(B, S, D)),
            "w1": _w((lambda *s: torch.randn(*s, dtype=torch.bfloat16) * 0.4)(D, F)),
            "b1": _w((lambda *s: torch.randn(*s, dtype=torch.bfloat16) * 0.2)(F)),
            "w2": _w((lambda *s: torch.randn(*s, dtype=torch.bfloat16) * 0.2)(F, D)),
            "b2": _w((lambda *s: torch.randn(*s, dtype=torch.bfloat16) * 0.2)(D)),
        }
    _B_in = _B_setup()

    return {
        "A_x": _A_in["x"],
        "A_c_kv": _A_in["c_kv"],
        "A_w_q": _A_in["w_q"],
        "A_w_uk": _A_in["w_uk"],
        "A_w_uv": _A_in["w_uv"],
        "A_w_o": _A_in["w_o"],
        "B_x": _B_in["x"],
        "B_w1": _B_in["w1"],
        "B_b1": _B_in["b1"],
        "B_w2": _B_in["w2"],
        "B_b2": _B_in["b2"],
        "gate_w": _w((lambda *s: torch.randn(*s, dtype=torch.bfloat16) * 0.05)(576) * 16.0),
    }

def reference(A_x, A_c_kv, A_w_q, A_w_uk, A_w_uv, A_w_o, B_x, B_w1, B_b1, B_w2, B_b2, gate_w):
    def _A_ref(x, c_kv, w_q, w_uk, w_uv, w_o):
        B, Sq, M = x.shape[0], x.shape[1], x.shape[2]
        Sk = c_kv.shape[1]
        H, D = w_q.shape[1], w_q.shape[2]
        q = torch.einsum("bqm,mhd->bhqd", x, w_q)
        k = torch.einsum("bkc,chd->bhkd", c_kv, w_uk)
        v = torch.einsum("bkc,chd->bhkd", c_kv, w_uv)
        scores = torch.einsum("bhqd,bhkd->bhqk", q, k) * (D ** -0.5)
        off = Sk - Sq
        qi = torch.arange(Sq)[:, None]
        kj = torch.arange(Sk)[None, :]
        cmask = kj <= (qi + off)
        scores = torch.where(cmask[None, None], scores, -1e9)
        p = _softmax(scores, axis=-1)
        ctx = torch.einsum("bhqk,bhkd->bhqd", p, v)
        return torch.einsum("bhqd,hdm->bqm", ctx, w_o)

    def _B_ref(x, w1, b1, w2, b2):
        h = torch.einsum("bsd,df->bsf", x, w1) + b1
        zero = torch.zeros_like(h)
        r = torch.where(h > zero, h, zero)
        h = r * r
        out = torch.einsum("bsf,fd->bsd", h, w2) + b2
        return out

    x = A_x
    g = _sigmoid((x * gate_w).sum(-1, keepdims=True))
    a = _A_ref(x, A_c_kv, A_w_q, A_w_uk, A_w_uv, A_w_o)
    b = _B_ref(x, B_w1, B_b1, B_w2, B_b2)
    return g * a + (1 - g) * b
```

```python
import sys
NAME = "gated_mix__compressed_kv_cla__dense_activation_squared_relu__decode"

WS_QABS = 0x0
WS_H = 0x10000
WS_GATE = 0x18000
WS_STATS = 0x20000
WS_CTXP = 0x40000
WS_APART = 0xC0000
WS_FPART = 0xF0000
WS_PART = 0x200000

class Asm:
    def __init__(self): self.lines = []
    def __call__(self, s): self.lines.append("    " + s)
    def label(self, l): self.lines.append(l + ":")
    def nop(self, n):
        while n > 0:
            k = min(n, 16); self(f"s_nop {k-1}"); n -= k
    def raw(self, s): self.lines.append(s)

def vr(a, n): return f"v[{a}:{a+n-1}]"

def kernel_header(a, name):
    a.raw(f".globl {name}")
    a.raw(".p2align 8")
    a.raw(f".type {name},@function")
    a.label(name)

def panel_step(a, W, T, ACC, AFR, first, slo="s30", shi="s31"):
    for t in range(4):
        for e in range(2):
            j8 = 2 * t + e
            for pr in range(4):
                a(f"v_perm_b32 v{T + 4*j8 + pr}, v{W + 4*(2*pr+1) + t}, v{W + 4*(2*pr) + t}, {slo if e == 0 else shi}")
    a.nop(2)
    for j8 in range(8):
        c = "0" if first else vr(ACC + 4*j8, 4)
        a(f"v_mfma_f32_16x16x32_bf16 {vr(ACC + 4*j8, 4)}, {vr(AFR, 4)}, {vr(T + 4*j8, 4)}, {c}")

def bf16_round(a, dst, src):
    a(f"v_cvt_pk_bf16_f32 v{dst}, v{src}, v{src}")
    a(f"v_lshlrev_b32 v{dst}, 16, v{dst}")

def row16_allreduce(a, op, v, t):
    for ctl in ("quad_perm:[1,0,3,2]", "quad_perm:[2,3,0,1]", "row_half_mirror", "row_mirror"):
        a.nop(2)
        a(f"{op}_dpp v{t}, v{v}, v{v} {ctl} row_mask:0xf bank_mask:0xf")
        a(f"v_mov_b32 v{v}, v{t}")

def gen_k1(a):
    kernel_header(a, "k1_kernel")
    a("s_cmp_ge_u32 s2, 293")
    a("s_cbranch_scc1 k1_end")
    a("s_load_dwordx2 s[4:5], s[0:1], 0")
    a("s_load_dwordx4 s[8:11], s[0:1], 16")
    a("s_load_dwordx4 s[12:15], s[0:1], 56")
    a("s_load_dwordx2 s[16:17], s[0:1], 88")
    a("s_load_dwordx2 s[18:19], s[0:1], 112")
    a("v_lshrrev_b32 v1, 6, v0")
    a("v_and_b32 v2, 63, v0")
    a("v_and_b32 v3, 15, v0")
    a("v_bfe_u32 v4, v0, 4, 2")
    a("v_readfirstlane_b32 s20, v1")
    a("s_mov_b32 s30, 0x05040100")
    a("s_mov_b32 s31, 0x07060302")
    a("s_waitcnt lgkmcnt(0)")
    a("s_cmp_eq_u32 s2, 292")
    a("s_cbranch_scc1 k1_gate")
    a("s_cmp_ge_u32 s2, 256")
    a("s_cbranch_scc1 k1_ffn1_setup")
    a("s_and_b32 s21, s2, 31")
    a("s_lshr_b32 s26, s2, 5")
    a("s_lshl_b32 s27, s21, 8")
    a("s_add_u32 s22, s8, s27")
    a("s_addc_u32 s23, s9, 0")
    a("s_mov_b32 s24, 8192")
    a("s_and_b32 s28, s20, 3")
    a("s_lshl_b32 s28, s28, 4")
    a("s_lshl_b32 s29, s26, 6")
    a("s_add_u32 s28, s28, s29")
    a("v_add_u32 v5, s28, v3")
    a("v_lshlrev_b32 v5, 13, v5")
    a("v_lshl_add_u32 v5, v4, 4, v5")
    a("v_add_u32 v5, s27, v5")
    for s in range(4):
        a(f"global_load_dwordx4 {vr(184 + 4*s, 4)}, v5, s[10:11] offset:{64*s}")
    a("s_branch k1_common")
    a.label("k1_ffn1_setup")
    a("s_sub_u32 s21, s2, 256")
    a("s_lshl_b32 s27, s21, 8")
    a("s_add_u32 s22, s12, s27")
    a("s_addc_u32 s23, s13, 0")
    a("s_mov_b32 s24, 9216")
    a("v_and_b32 v5, 127, v0")
    a("v_lshlrev_b32 v5, 1, v5")
    a("v_add_u32 v5, s27, v5")
    a("global_load_ushort v200, v5, s[14:15]")
    a.label("k1_common")
    a("s_mul_i32 s25, s24, 25")
    a("s_mul_i32 s28, s20, 192")
    a("v_and_b32 v6, 1, v3")
    a("v_mul_u32_u24 v6, 1152, v6")
    a("v_lshl_add_u32 v6, v4, 4, v6")
    a("v_add_u32 v6, s28, v6")
    for s in range(3):
        a(f"global_load_dwordx4 {vr(12 + 4*s, 4)}, v6, s[4:5] offset:{64*s}")
    a("s_mul_i32 s28, s20, 96")
    a("v_lshl_add_u32 v7, v4, 3, s28")
    a("v_mul_lo_u32 v7, v7, s24")
    a("v_lshl_add_u32 v7, v3, 4, v7")
    for s in range(3):
        for r in range(8):
            a(f"global_load_dwordx4 {vr(24 + 32*s + 4*r, 4)}, v7, s[22:23]")
            if not (s == 2 and r == 7):
                a(f"v_add_u32 v7, {'s24' if r < 7 else 's25'}, v7")
    for s in range(3):
        a(f"s_waitcnt vmcnt({16 - 8*s})")
        panel_step(a, 24 + 32*s, 120, 152, 12 + 4*s, s == 0)
    a.nop(10)
    a("v_lshlrev_b32 v8, 5, v3")
    a("s_lshl_b32 s28, s20, 10")
    a("v_add_u32 v8, s28, v8")
    a("s_mov_b64 exec, 0xffff")
    for j8 in range(8):
        a(f"ds_write_b32 v8, v{152 + 4*j8} offset:{4*j8}")
        a(f"ds_write_b32 v8, v{152 + 4*j8 + 1} offset:{512 + 4*j8}")
    a("s_mov_b64 exec, -1")
    a("s_waitcnt lgkmcnt(0)")
    a("s_barrier")
    a("s_cmp_ge_u32 s20, 4")
    a("s_cbranch_scc1 k1_skip_red")
    a("v_lshlrev_b32 v8, 2, v0")
    for w in range(6):
        a(f"ds_read_b32 v{24 + w}, v8 offset:{1024*w}")
    a("s_waitcnt lgkmcnt(0)")
    for w in range(1, 6):
        a(f"v_add_f32 v24, v24, v{24 + w}")
    a("s_cmp_ge_u32 s2, 256")
    a("s_cbranch_scc1 k1_ffn1_epi")
    a("v_cvt_pk_bf16_f32 v24, v24, v24")
    a("v_lshlrev_b32 v8, 1, v0")
    a("ds_write_b16 v8, v24 offset:6144")
    a("s_waitcnt lgkmcnt(0)")
    a.label("k1_skip_red")
    a("s_cmp_ge_u32 s2, 256")
    a("s_cbranch_scc1 k1_end")
    a("s_barrier")
    a("s_cmp_ge_u32 s20, 4")
    a("s_cbranch_scc1 k1_end")
    a("v_and_b32 v6, 1, v3")
    a("v_lshlrev_b32 v6, 8, v6")
    a("v_lshl_add_u32 v6, v4, 4, v6")
    for s in range(4):
        a(f"ds_read_b128 {vr(24 + 4*s, 4)}, v6 offset:{6144 + 64*s}")
    a("s_waitcnt lgkmcnt(0)")
    for s in range(4):
        c = "0" if s == 0 else vr(40, 4)
        a(f"v_mfma_f32_16x16x32_bf16 {vr(40, 4)}, {vr(24 + 4*s, 4)}, {vr(184 + 4*s, 4)}, {c}")
    a.nop(10)
    a("v_cvt_pk_bf16_f32 v44, v40, v41")
    a("s_lshl_b32 s28, s20, 4")
    a("s_lshl_b32 s29, s26, 6")
    a("s_add_u32 s28, s28, s29")
    a("v_add_u32 v5, s28, v3")
    a("v_lshlrev_b32 v5, 1, v5")
    a("s_lshl_b32 s28, s21, 10")
    a("v_add_u32 v5, s28, v5")
    a("v_add_u32 v6, 0x8000, v5")
    a("s_mov_b64 exec, 0xffff")
    a("global_store_short v5, v44, s[18:19]")
    a("global_store_short_d16_hi v6, v44, s[18:19]")
    a("s_endpgm")
    a.label("k1_ffn1_epi")
    bf16_round(a, 24, 24)
    a("v_lshlrev_b32 v200, 16, v200")
    a("v_add_f32 v24, v24, v200")
    bf16_round(a, 24, 24)
    a("v_max_f32 v24, 0, v24")
    a("v_mul_f32 v24, v24, v24")
    a("v_cvt_pk_bf16_f32 v24, v24, v24")
    a("v_lshrrev_b32 v5, 7, v0")
    a("v_mul_u32_u24 v5, 9216, v5")
    a("v_and_b32 v6, 127, v0")
    a("v_lshl_add_u32 v5, v6, 1, v5")
    a(f"v_add_u32 v5, {WS_H}, v5")
    a("v_add_u32 v5, s27, v5")
    a("global_store_short v5, v24, s[18:19]")
    a("s_endpgm")
    a.label("k1_gate")
    a("s_cmp_ge_u32 s20, 2")
    a("s_cbranch_scc1 k1_end")
    a("s_mul_i32 s28, s20, 1152")
    a("v_lshlrev_b32 v5, 1, v2")
    a("v_add_u32 v6, s28, v5")
    for k in range(9):
        a(f"global_load_ushort v{10 + k}, v6, s[4:5] offset:{128*k}")
        a(f"global_load_ushort v{20 + k}, v5, s[16:17] offset:{128*k}")
    a("s_waitcnt vmcnt(0)")
    a("v_mov_b32 v30, 0")
    for k in range(9):
        a(f"v_lshlrev_b32 v{10+k}, 16, v{10+k}")
        a(f"v_lshlrev_b32 v{20+k}, 16, v{20+k}")
        a(f"v_mul_f32 v{10+k}, v{10+k}, v{20+k}")
        bf16_round(a, 10 + k, 10 + k)
        a(f"v_add_f32 v30, v30, v{10+k}")
    row16_allreduce(a, "v_add_f32", 30, 31)
    a.nop(1)
    a("v_readlane_b32 s28, v30, 16")
    a("v_readlane_b32 s29, v30, 32")
    a("v_readlane_b32 s25, v30, 48")
    a.nop(2)
    a("v_add_f32 v30, s28, v30")
    a("v_add_f32 v30, s29, v30")
    a("v_add_f32 v30, s25, v30")
    bf16_round(a, 30, 30)
    a("v_mul_f32 v30, 0xbfb8aa3b, v30")
    a("v_exp_f32 v30, v30")
    a.nop(1)
    a("v_add_f32 v30, 1.0, v30")
    a("v_rcp_f32 v30, v30")
    a.nop(1)
    bf16_round(a, 30, 30)
    a("s_lshl_b32 s28, s20, 2")
    a(f"v_mov_b32 v5, {WS_GATE}")
    a("v_add_u32 v5, s28, v5")
    a("s_mov_b64 exec, 1")
    a("global_store_dword v5, v30, s[18:19]")
    a.label("k1_end")
    a("s_endpgm")

def panel4_body(a, pre, sW, afrag_loaded_wait, out_s_off):
    a("s_cmp_eq_u32 s21, 4")
    a("s_cselect_b32 s28, 7, 15")
    a("v_and_b32 v5, s28, v3")
    a("s_lshl_b32 s28, s20, 5")
    a("s_add_u32 s28, s28, s22")
    a("v_lshl_add_u32 v7, v4, 3, s28")
    a("v_mul_u32_u24 v7, 1152, v7")
    a("v_lshl_add_u32 v7, v5, 4, v7")
    a("s_lshl_b32 s28, s21, 8")
    a("v_add_u32 v7, s28, v7")
    for r in range(8):
        off = 1152 * (r % 3)
        a(f"global_load_dwordx4 {vr(24 + 4*r, 4)}, v7, {sW} offset:{off}")
        if r % 3 == 2:
            a("v_add_u32 v7, 3456, v7")
    afrag_loaded_wait(a)
    a("s_waitcnt vmcnt(0)")
    panel_step(a, 24, 120, 152, 12, True)
    a.nop(10)
    a("v_lshlrev_b32 v8, 5, v3")
    a("s_lshl_b32 s28, s20, 10")
    a("v_add_u32 v8, s28, v8")
    a("s_mov_b64 exec, 0xffff")
    for j8 in range(8):
        a(f"ds_write_b32 v8, v{152 + 4*j8} offset:{4*j8}")
        a(f"ds_write_b32 v8, v{152 + 4*j8 + 1} offset:{512 + 4*j8}")
    a("s_mov_b64 exec, -1")
    a("s_waitcnt lgkmcnt(0)")
    a("s_barrier")
    a("v_lshlrev_b32 v8, 2, v0")
    for w in range(4):
        a(f"ds_read_b32 v{24 + w}, v8 offset:{1024*w}")
    a("s_waitcnt lgkmcnt(0)")
    for w in range(1, 4):
        a(f"v_add_f32 v24, v24, v{24 + w}")
    a("v_lshrrev_b32 v5, 7, v0")
    a("v_mul_u32_u24 v5, 2560, v5")
    a("v_and_b32 v6, 127, v0")
    a("v_lshl_add_u32 v5, v6, 2, v5")
    a("s_lshl_b32 s28, s21, 9")
    a(f"s_add_u32 s28, s28, {out_s_off}")
    a("v_add_u32 v5, s28, v5")

def gen_k2(a):
    kernel_header(a, "k2_kernel")
    a("s_cmp_ge_u32 s2, 436")
    a("s_cbranch_scc1 k2_end")
    a("s_load_dwordx2 s[4:5], s[0:1], 8")
    a("s_load_dwordx2 s[6:7], s[0:1], 72")
    a("s_load_dwordx2 s[18:19], s[0:1], 112")
    a("v_lshrrev_b32 v1, 6, v0")
    a("v_and_b32 v2, 63, v0")
    a("v_and_b32 v3, 15, v0")
    a("v_bfe_u32 v4, v0, 4, 2")
    a("v_readfirstlane_b32 s20, v1")
    a("s_mov_b32 s30, 0x05040100")
    a("s_mov_b32 s31, 0x07060302")
    a("s_waitcnt lgkmcnt(0)")
    a("s_cmp_ge_u32 s2, 256")
    a("s_cbranch_scc1 k2_ffn2")
    a("s_lshr_b32 s21, s2, 7")
    a("s_and_b32 s22, s2, 127")
    a("v_and_b32 v5, 31, v2")
    a("v_lshrrev_b32 v6, 5, v2")
    a("s_lshl_b32 s28, s21, 15")
    a("s_lshl_b32 s29, s20, 8")
    a("s_add_u32 s28, s28, s29")
    a("v_lshlrev_b32 v7, 10, v5")
    a("v_lshl_add_u32 v7, v6, 4, v7")
    a("v_add_u32 v7, s28, v7")
    for s in range(8):
        a(f"global_load_dwordx4 {vr(16 + 4*s, 4)}, v7, s[18:19] offset:{32*s}")
    a("s_lshl_b32 s28, s2, 16")
    a("s_lshl_b32 s29, s20, 8")
    a("s_add_u32 s28, s28, s29")
    a("s_add_u32 s24, s4, s28")
    a("s_addc_u32 s25, s5, 0")
    a("v_lshlrev_b32 v8, 2, v4")
    a("v_xor_b32 v8, v8, v3")
    for q in range(4):
        a(f"v_xor_b32 v{9+q}, {q}, v8")
        a(f"v_lshlrev_b32 v{9+q}, 4, v{9+q}")
        a(f"v_lshl_add_u32 v{9+q}, v4, 10, v{9+q}")
        if q:
            a(f"v_add_u32 v{9+q}, {4096*q}, v{9+q}")
    a("s_lshl_b32 s26, s20, 14")
    for i in range(16):
        a(f"s_add_u32 m0, s26, {1024*i}")
        a("s_nop 0")
        a(f"global_load_lds_dwordx4 v{9 + (i & 3)}, s[24:25]")
        if i < 12:
            a(f"v_add_u32 v{9 + (i&3)}, 16384, v{9 + (i&3)}")
    a("v_and_b32 v8, 3, v5")
    a("v_lshlrev_b32 v8, 2, v8")
    a("v_bfe_u32 v9, v5, 2, 2")
    a("v_or_b32 v8, v8, v9")
    a("v_xor_b32 v8, v8, v6")
    a("v_lshlrev_b32 v9, 8, v5")
    a("v_add_u32 v9, s26, v9")
    for s in range(8):
        a(f"v_xor_b32 v10, {2*s}, v8")
        a(f"v_lshl_add_u32 v{48 + s}, v10, 4, v9")
    a("s_waitcnt vmcnt(0)")
    for s in range(8):
        a(f"ds_read_b128 {vr(64 + 8*s, 4)}, v{48 + s}")
        a(f"ds_read_b128 {vr(64 + 8*s + 4, 4)}, v{48 + s} offset:8192")
    for s in range(8):
        a(f"s_waitcnt lgkmcnt({14 - 2*s})")
        for kb in range(2):
            c = "0" if s == 0 else vr(128 + 16*kb, 16)
            a(f"v_mfma_f32_32x32x16_bf16 {vr(128 + 16*kb, 16)}, {vr(16 + 4*s, 4)}, {vr(64 + 8*s + 4*kb, 4)}, {c}")
    a.nop(12)
    a("s_lshl_b32 s28, s20, 13")
    a("s_add_u32 s28, s28, 65536")
    a("v_lshlrev_b32 v8, 10, v6")
    a("v_lshl_add_u32 v8, v5, 2, v8")
    a("v_add_u32 v8, s28, v8")
    for kb in range(2):
        for r in range(16):
            a(f"ds_write_b32 v8, v{128 + 16*kb + r} offset:{((r&3) + 8*(r>>2))*256 + kb*128}")
    a("s_waitcnt lgkmcnt(0)")
    a("s_barrier")
    a("v_lshlrev_b32 v8, 5, v0")
    a("v_add_u32 v8, 65536, v8")
    for w in range(4):
        a(f"ds_read_b128 {vr(64 + 8*w, 4)}, v8 offset:{8192*w}")
        a(f"ds_read_b128 {vr(64 + 8*w + 4, 4)}, v8 offset:{8192*w + 16}")
    a("s_waitcnt lgkmcnt(0)")
    for e in range(8):
        a(f"v_add_f32 v{64+e}, v{64+e}, v{72+e}")
        a(f"v_add_f32 v{80+e}, v{80+e}, v{88+e}")
    for e in range(8):
        a(f"v_add_f32 v{64+e}, v{64+e}, v{80+e}")
    a("s_mov_b32 s28, 0x3db504f3")
    for e in range(8):
        bf16_round(a, 64 + e, 64 + e)
        a(f"v_mul_f32 v{64+e}, s28, v{64+e}")
        bf16_round(a, 64 + e, 64 + e)
    a("v_max3_f32 v72, v64, v65, v66")
    a("v_max3_f32 v72, v72, v67, v68")
    a("v_max3_f32 v72, v72, v69, v70")
    a("v_max_f32 v72, v72, v71")
    for ctl in ("quad_perm:[1,0,3,2]", "quad_perm:[2,3,0,1]", "row_half_mirror"):
        a.nop(2)
        a(f"v_max_f32_dpp v73, v72, v72 {ctl} row_mask:0xf bank_mask:0xf")
        a("v_mov_b32 v72, v73")
    a("s_mov_b32 s29, 0x3fb8aa3b")
    a("v_mul_f32 v73, s29, v72")
    for e in range(8):
        a(f"v_fma_f32 v{64+e}, v{64+e}, s29, -v73")
        a(f"v_exp_f32 v{64+e}, v{64+e}")
    a.nop(1)
    a("v_add_f32 v74, v64, v65")
    for e in range(2, 8):
        a(f"v_add_f32 v74, v74, v{64+e}")
    for ctl in ("quad_perm:[1,0,3,2]", "quad_perm:[2,3,0,1]", "row_half_mirror"):
        a.nop(2)
        a(f"v_add_f32_dpp v75, v74, v74 {ctl} row_mask:0xf bank_mask:0xf")
        a("v_mov_b32 v74, v75")
    for e in range(4):
        a(f"v_cvt_pk_bf16_f32 v{76+e}, v{64+2*e}, v{65+2*e}")
    a("v_lshrrev_b32 v8, 3, v0")
    a("v_and_b32 v9, 7, v0")
    a("v_mul_u32_u24 v10, 144, v8")
    a("v_lshl_add_u32 v10, v9, 4, v10")
    a(f"ds_write_b128 v10, {vr(76, 4)} offset:0")
    a.lines.pop()
    a("v_add_u32 v10, 98304, v10")
    a(f"ds_write_b128 v10, {vr(76, 4)}")
    a("v_mov_b32 v73, v74")
    a("s_lshl_b32 s28, s21, 15")
    a("s_lshl_b32 s29, s22, 3")
    a("s_add_u32 s28, s28, s29")
    a(f"s_add_u32 s28, s28, {WS_STATS}")
    a("v_lshlrev_b32 v10, 10, v8")
    a("v_add_u32 v10, s28, v10")
    a("v_cmp_eq_u32 vcc, 0, v9")
    a("s_and_saveexec_b64 s[32:33], vcc")
    a("global_store_dwordx2 v10, v[72:73], s[18:19]")
    a("s_mov_b64 exec, s[32:33]")
    a("s_waitcnt lgkmcnt(0)")
    a("s_barrier")
    a("v_mul_u32_u24 v8, 144, v5")
    a("v_lshl_add_u32 v8, v6, 4, v8")
    a("v_add_u32 v8, 98304, v8")
    for s in range(4):
        a(f"ds_read_b128 {vr(16 + 4*s, 4)}, v8 offset:{32*s}")
    a("v_bfe_u32 v8, v2, 2, 2")
    a("v_bfe_u32 v9, v2, 4, 1")
    a("v_bfe_u32 v10, v2, 1, 1")
    a("v_lshl_add_u32 v9, v9, 1, v10")
    a("v_lshlrev_b32 v10, 1, v6")
    a("v_xor_b32 v9, v9, v10")
    a("v_lshl_add_u32 v10, v6, 3, v8")
    a("v_lshlrev_b32 v10, 8, v10")
    a("v_and_b32 v11, 1, v2")
    a("v_lshl_add_u32 v10, v11, 3, v10")
    a("v_add_u32 v10, s26, v10")
    for t in range(2):
        for cb in range(4):
            a(f"v_xor_b32 v11, {cb}, v8")
            a("v_lshlrev_b32 v11, 2, v11")
            a(f"v_xor_b32 v12, {t}, v9")
            a("v_add_u32 v11, v11, v12")
            a(f"v_lshl_add_u32 v{32 + 4*t + cb}, v11, 4, v10")
            if t:
                a(f"v_add_u32 v{32 + 4*t + cb}, 1024, v{32 + 4*t + cb}")
    for cb in range(4):
        for s in range(4):
            for t in range(2):
                a(f"ds_read_b64_tr_b16 {vr(64 + 16*cb + 4*s + 2*t, 2)}, v{32 + 4*t + cb} offset:{4096*s}")
    for cb in range(4):
        a(f"s_waitcnt lgkmcnt({min(15, 24 - 8*cb)})")
        for s in range(4):
            c = "0" if s == 0 else vr(128 + 16*cb, 16)
            a(f"v_mfma_f32_32x32x16_bf16 {vr(128 + 16*cb, 16)}, {vr(64 + 16*cb + 4*s, 4)}, {vr(16 + 4*s, 4)}, {c}")
    a.nop(12)
    a("v_mul_u32_u24 v8, 272, v5")
    a("v_lshl_add_u32 v8, v6, 3, v8")
    a("v_add_u32 v8, s26, v8")
    for cb in range(4):
        for rq in range(4):
            b0 = 128 + 16*cb + 4*rq
            a(f"v_cvt_pk_bf16_f32 v{b0}, v{b0}, v{b0+1}")
            a(f"v_cvt_pk_bf16_f32 v{b0+1}, v{b0+2}, v{b0+3}")
            a(f"ds_write_b64 v8, {vr(b0, 2)} offset:{64*cb + 16*rq}")
    a("s_waitcnt lgkmcnt(0)")
    a("v_mul_u32_u24 v8, 272, v4")
    a("v_lshl_add_u32 v8, v3, 4, v8")
    a("v_add_u32 v8, s26, v8")
    for i in range(8):
        a(f"ds_read_b128 {vr(64 + 4*i, 4)}, v8 offset:{1088*i}")
    a("s_lshl_b32 s28, s2, 15")
    a("s_lshl_b32 s29, s20, 8")
    a("s_add_u32 s28, s28, s29")
    a(f"s_add_u32 s28, s28, {WS_PART}")
    a("v_lshlrev_b32 v8, 10, v4")
    a("v_lshl_add_u32 v8, v3, 4, v8")
    a("v_add_u32 v8, s28, v8")
    for i in range(8):
        a(f"s_waitcnt lgkmcnt({7 - i})")
        a(f"global_store_dwordx4 v8, {vr(64 + 4*i, 4)}, s[18:19]")
        if i < 7:
            a("v_add_u32 v8, 4096, v8")
    a("s_endpgm")
    a.label("k2_ffn2")
    a("s_sub_u32 s28, s2, 256")
    a("s_mul_i32 s29, s28, 52429")
    a("s_lshr_b32 s23, s29, 18")
    a("s_mul_i32 s29, s23, 5")
    a("s_sub_u32 s21, s28, s29")
    a("s_lshl_b32 s22, s23, 7")
    a("v_and_b32 v6, 1, v3")
    a("v_mul_u32_u24 v6, 9216, v6")
    a("v_lshl_add_u32 v6, v4, 4, v6")
    a("s_lshl_b32 s28, s20, 6")
    a("s_lshl_b32 s29, s23, 8")
    a("s_add_u32 s28, s28, s29")
    a(f"s_add_u32 s28, s28, {WS_H}")
    a("v_add_u32 v6, s28, v6")
    a(f"global_load_dwordx4 {vr(12, 4)}, v6, s[18:19]")
    a("s_mul_i32 s34, s23, 5120")
    a(f"s_add_u32 s34, s34, {WS_FPART}")
    panel4_body(a, "k2", "s[6:7]", lambda a: None, "s34")
    a("global_store_dword v5, v24, s[18:19]")
    a.label("k2_end")
    a("s_endpgm")

def gen_k3(a):
    kernel_header(a, "k3_kernel")
    a("s_cmp_ge_u32 s2, 256")
    a("s_cbranch_scc1 k3_end")
    a("s_load_dwordx2 s[6:7], s[0:1], 32")
    a("s_load_dwordx2 s[18:19], s[0:1], 112")
    a("v_lshrrev_b32 v1, 6, v0")
    a("v_and_b32 v2, 63, v0")
    a("v_and_b32 v3, 15, v0")
    a("v_bfe_u32 v4, v0, 4, 2")
    a("v_readfirstlane_b32 s20, v1")
    a("s_mov_b32 s30, 0x05040100")
    a("s_mov_b32 s31, 0x07060302")
    a("s_and_b32 s21, s2, 31")
    a("s_lshr_b32 s22, s2, 5")
    a("s_waitcnt lgkmcnt(0)")
    a("v_lshrrev_b32 v5, 7, v0")
    a("v_lshlrev_b32 v5, 15, v5")
    a("v_and_b32 v6, 127, v0")
    a("v_lshl_add_u32 v5, v6, 3, v5")
    a("s_lshl_b32 s28, s21, 10")
    a(f"s_add_u32 s28, s28, {WS_STATS}")
    a("v_add_u32 v5, s28, v5")
    a("global_load_dwordx2 v[8:9], v5, s[18:19]")
    a("v_lshrrev_b32 v5, 3, v2")
    a("s_lshl_b32 s28, s20, 6")
    a("v_add_u32 v5, s28, v5")
    a("v_lshlrev_b32 v6, 15, v5")
    a("v_and_b32 v7, 7, v2")
    a("v_lshl_add_u32 v6, v7, 4, v6")
    a("s_lshl_b32 s28, s21, 10")
    a("s_lshl_b32 s29, s22, 7")
    a("s_add_u32 s28, s28, s29")
    a(f"s_add_u32 s28, s28, {WS_PART}")
    a("v_add_u32 v6, s28, v6")
    for i in range(8):
        a(f"global_load_dwordx4 {vr(64 + 4*i, 4)}, v6, s[18:19]")
        if i < 7:
            a("v_add_u32 v6, 0x40000, v6")
    a("s_and_b32 s28, s20, 1")
    a("s_lshl_b32 s28, s28, 5")
    a("s_lshl_b32 s29, s22, 6")
    a("s_add_u32 s28, s28, s29")
    a("v_lshl_add_u32 v6, v4, 3, s28")
    a("v_lshlrev_b32 v6, 13, v6")
    a("v_lshl_add_u32 v6, v3, 4, v6")
    a("s_lshl_b32 s28, s21, 8")
    a("v_add_u32 v6, s28, v6")
    for r in range(8):
        a(f"global_load_dwordx4 {vr(24 + 4*r, 4)}, v6, s[6:7]")
        if r < 7:
            a("v_add_u32 v6, 8192, v6")
    a("s_waitcnt vmcnt(16)")
    a("v_mov_b32 v10, v8")
    row16_allreduce(a, "v_max_f32", 10, 11)
    a.nop(1)
    a("v_readlane_b32 s28, v10, 16")
    a("v_readlane_b32 s29, v10, 32")
    a("v_readlane_b32 s25, v10, 48")
    a.nop(2)
    a("v_max_f32 v10, s28, v10")
    a("v_max_f32 v10, s29, v10")
    a("v_max_f32 v10, s25, v10")
    a.nop(1)
    a("v_readfirstlane_b32 s28, v10")
    a("v_mov_b32 v11, s20")
    a("v_lshlrev_b32 v11, 2, v11")
    a.nop(2)
    a("v_mov_b32 v10, s28")
    a("ds_write_b32 v11, v10")
    a("s_waitcnt lgkmcnt(0)")
    a("s_barrier")
    a("v_and_b32 v11, 8, v11")
    a("ds_read_b64 v[12:13], v11")
    a("s_waitcnt lgkmcnt(0)")
    a("v_max_f32 v10, v12, v13")
    a("v_sub_f32 v10, v8, v10")
    a("v_mul_f32 v10, 0x3fb8aa3b, v10")
    a("v_exp_f32 v10, v10")
    a.nop(1)
    a("v_mul_f32 v12, v10, v9")
    row16_allreduce(a, "v_add_f32", 12, 13)
    a.nop(1)
    a("v_readlane_b32 s28, v12, 16")
    a("v_readlane_b32 s29, v12, 32")
    a("v_readlane_b32 s25, v12, 48")
    a.nop(2)
    a("v_add_f32 v12, s28, v12")
    a("v_add_f32 v12, s29, v12")
    a("v_add_f32 v12, s25, v12")
    a.nop(1)
    a("v_readfirstlane_b32 s28, v12")
    a("v_mov_b32 v11, s20")
    a("v_lshlrev_b32 v11, 2, v11")
    a.nop(2)
    a("v_mov_b32 v12, s28")
    a("ds_write_b32 v11, v12 offset:16")
    a("s_waitcnt lgkmcnt(0)")
    a("s_barrier")
    a("v_and_b32 v11, 8, v11")
    a("ds_read_b64 v[12:13], v11 offset:16")
    a("s_waitcnt lgkmcnt(0)")
    a("v_add_f32 v12, v12, v13")
    a("v_rcp_f32 v12, v12")
    a.nop(1)
    a("v_mul_f32 v10, v10, v12")
    a("v_lshlrev_b32 v11, 2, v0")
    a("ds_write_b32 v11, v10 offset:64")
    a("s_waitcnt lgkmcnt(0)")
    a("s_barrier")
    a("v_lshlrev_b32 v11, 2, v5")
    for i in range(8):
        a(f"ds_read_b32 v{12 + i}, v11 offset:{64 + 32*i}")
    a("s_waitcnt vmcnt(8) lgkmcnt(0)")
    for e in range(8):
        a(f"v_mov_b32 v{96 + e}, 0")
    for i in range(8):
        for d in range(4):
            a(f"v_lshlrev_b32 v104, 16, v{64 + 4*i + d}")
            a(f"v_and_b32 v105, 0xffff0000, v{64 + 4*i + d}")
            a(f"v_fmac_f32 v{96 + 2*d}, v104, v{12 + i}")
            a(f"v_fmac_f32 v{96 + 2*d + 1}, v105, v{12 + i}")
    a("v_lshlrev_b32 v11, 5, v0")
    a(f"ds_write_b128 v11, {vr(96, 4)} offset:2048")
    a(f"ds_write_b128 v11, {vr(100, 4)} offset:2064")
    a("s_waitcnt lgkmcnt(0)")
    a("s_barrier")
    a("s_cmp_ge_u32 s20, 2")
    a("s_cbranch_scc1 k3_skip")
    a("s_lshl_b32 s28, s20, 12")
    a("v_lshlrev_b32 v11, 2, v2")
    a("v_add_u32 v11, s28, v11")
    for k in range(16):
        a(f"ds_read_b32 v{96 + k}, v11 offset:{2048 + 256*k}")
    a("s_waitcnt lgkmcnt(0)")
    for k in range(1, 16):
        a(f"v_add_f32 v96, v96, v{96 + k}")
    a("v_cvt_pk_bf16_f32 v96, v96, v96")
    a("v_lshlrev_b32 v11, 1, v0")
    a("ds_write_b16 v11, v96 offset:12288")
    a("s_waitcnt lgkmcnt(0)")
    a.label("k3_skip")
    a("s_barrier")
    a("s_cmp_ge_u32 s20, 2")
    a("s_cbranch_scc1 k3_end")
    a("v_and_b32 v6, 1, v3")
    a("v_lshlrev_b32 v6, 7, v6")
    a("v_lshl_add_u32 v6, v4, 4, v6")
    a("s_lshl_b32 s28, s20, 6")
    a("v_add_u32 v6, s28, v6")
    a(f"ds_read_b128 {vr(12, 4)}, v6 offset:12288")
    a("s_waitcnt vmcnt(0) lgkmcnt(0)")
    panel_step(a, 24, 120, 152, 12, True)
    a.nop(10)
    a("s_lshl_b32 s28, s22, 1")
    a("s_add_u32 s28, s28, s20")
    a("s_lshl_b32 s28, s28, 15")
    a("s_lshl_b32 s29, s21, 9")
    a("s_add_u32 s28, s28, s29")
    a(f"s_add_u32 s28, s28, {WS_CTXP}")
    a("v_lshlrev_b32 v5, 5, v3")
    a("v_add_u32 v5, s28, v5")
    a("v_add_u32 v6, 16384, v5")
    for bb in range(2):
        for j8 in range(8):
            a(f"v_mov_b32 v{24 + 8*bb + j8}, v{152 + 4*j8 + bb}")
    a("s_mov_b64 exec, 0xffff")
    a(f"global_store_dwordx4 v5, {vr(24, 4)}, s[18:19]")
    a(f"global_store_dwordx4 v5, {vr(28, 4)}, s[18:19] offset:16")
    a(f"global_store_dwordx4 v6, {vr(32, 4)}, s[18:19]")
    a(f"global_store_dwordx4 v6, {vr(36, 4)}, s[18:19] offset:16")
    a.label("k3_end")
    a("s_endpgm")

def gen_k4(a):
    kernel_header(a, "k4_kernel")
    a("s_cmp_ge_u32 s2, 160")
    a("s_cbranch_scc1 k4_end")
    a("s_load_dwordx2 s[6:7], s[0:1], 40")
    a("s_load_dwordx2 s[8:9], s[0:1], 80")
    a("s_load_dwordx4 s[12:15], s[0:1], 96")
    a("s_load_dwordx2 s[18:19], s[0:1], 112")
    a("v_lshrrev_b32 v1, 6, v0")
    a("v_and_b32 v2, 63, v0")
    a("v_and_b32 v3, 15, v0")
    a("v_bfe_u32 v4, v0, 4, 2")
    a("v_readfirstlane_b32 s20, v1")
    a("s_mov_b32 s30, 0x05040100")
    a("s_mov_b32 s31, 0x07060302")
    a("s_mul_i32 s29, s2, 52429")
    a("s_lshr_b32 s23, s29, 18")
    a("s_mul_i32 s29, s23, 5")
    a("s_sub_u32 s21, s2, s29")
    a("s_lshl_b32 s22, s23, 7")
    a("s_waitcnt lgkmcnt(0)")
    a("v_lshrrev_b32 v5, 7, v0")
    a("v_lshlrev_b32 v5, 14, v5")
    a("v_and_b32 v6, 127, v0")
    a("v_lshl_add_u32 v5, v6, 2, v5")
    a("s_lshl_b32 s28, s23, 9")
    a(f"s_add_u32 s28, s28, {WS_CTXP}")
    a("v_add_u32 v5, s28, v5")
    for k in range(16):
        a(f"global_load_dword v{200 + k}, v5, s[18:19]")
        if k < 15:
            a("v_add_u32 v5, 0x8000, v5")
    def afrag(a):
        a("s_waitcnt vmcnt(8)")
        for k in range(1, 16):
            a(f"v_add_f32 v200, v200, v{200 + k}")
        a("v_cvt_pk_bf16_f32 v200, v200, v200")
        a("v_lshlrev_b32 v5, 1, v0")
        a("ds_write_b16 v5, v200 offset:4096")
        a("s_waitcnt lgkmcnt(0)")
        a("s_barrier")
        a("v_and_b32 v6, 1, v3")
        a("v_lshlrev_b32 v6, 8, v6")
        a("v_lshl_add_u32 v6, v4, 4, v6")
        a("s_lshl_b32 s28, s20, 6")
        a("v_add_u32 v6, s28, v6")
        a(f"ds_read_b128 {vr(12, 4)}, v6 offset:4096")
        a("s_waitcnt lgkmcnt(0)")
    a("s_mul_i32 s34, s23, 5120")
    a(f"s_add_u32 s34, s34, {WS_APART}")
    panel4_body(a, "k4", "s[6:7]", afrag, "s34")
    a("global_store_dword v5, v24, s[18:19] sc1")
    a("s_waitcnt vmcnt(0)")
    a("s_barrier")
    a("s_cmp_lg_u32 s20, 0")
    a("s_cbranch_scc1 k4_wait")
    a("s_lshl_b32 s28, s21, 2")
    a("v_mov_b32 v5, s28")
    a("v_mov_b32 v6, 1")
    a("s_mov_b64 exec, 1")
    a("global_atomic_add v7, v5, v6, s[14:15] sc0 sc1")
    a("s_waitcnt vmcnt(0)")
    a("v_mov_b32 v5, 0")
    a("ds_write_b32 v5, v7 offset:8192")
    a("s_waitcnt lgkmcnt(0)")
    a("s_mov_b64 exec, -1")
    a.label("k4_wait")
    a("s_barrier")
    a("v_mov_b32 v5, 0")
    a("ds_read_b32 v7, v5 offset:8192")
    a("s_waitcnt lgkmcnt(0)")
    a("v_readfirstlane_b32 s28, v7")
    a("s_cmp_lg_u32 s28, 31")
    a("s_cbranch_scc1 k4_end")
    a("v_lshrrev_b32 v5, 7, v0")
    a("v_and_b32 v6, 127, v0")
    a("s_lshl_b32 s28, s21, 7")
    a("v_add_u32 v6, s28, v6")
    a("v_mul_u32_u24 v7, 2560, v5")
    a("v_lshl_add_u32 v7, v6, 2, v7")
    a(f"v_add_u32 v8, {WS_APART}, v7")
    for k in range(32):
        a(f"global_load_dword v{32 + k}, v8, s[18:19] sc1")
        if k < 31:
            a("v_add_u32 v8, 5120, v8")
    a(f"v_add_u32 v8, {WS_FPART}, v7")
    for k in range(36):
        a(f"global_load_dword v{64 + k}, v8, s[18:19]")
        if k < 35:
            a("v_add_u32 v8, 5120, v8")
    a("v_min_u32 v9, 575, v6")
    a("v_lshlrev_b32 v9, 1, v9")
    a("global_load_ushort v100, v9, s[8:9]")
    a("v_lshlrev_b32 v9, 2, v5")
    a(f"v_add_u32 v9, {WS_GATE}, v9")
    a("global_load_dword v101, v9, s[18:19]")
    a("s_waitcnt vmcnt(0)")
    for k in range(1, 32):
        a(f"v_add_f32 v32, v32, v{32 + k}")
    for k in range(1, 36):
        a(f"v_add_f32 v64, v64, v{64 + k}")
    bf16_round(a, 32, 32)
    bf16_round(a, 64, 64)
    a("v_lshlrev_b32 v100, 16, v100")
    a("v_add_f32 v64, v64, v100")
    bf16_round(a, 64, 64)
    a("v_mul_f32 v32, v101, v32")
    bf16_round(a, 32, 32)
    a("v_sub_f32 v101, 1.0, v101")
    bf16_round(a, 101, 101)
    a("v_mul_f32 v64, v101, v64")
    bf16_round(a, 64, 64)
    a("v_add_f32 v32, v32, v64")
    a("v_cvt_pk_bf16_f32 v32, v32, v32")
    a("v_mul_u32_u24 v7, 1152, v5")
    a("v_lshl_add_u32 v7, v6, 1, v7")
    a("v_cmp_gt_u32 vcc, 576, v6")
    a("s_and_saveexec_b64 s[32:33], vcc")
    a("global_store_short v7, v32, s[12:13]")
    a.label("k4_end")
    a("s_endpgm")

def kd(name, vgpr, sgpr=48):
    return f""".amdhsa_kernel {name}
  .amdhsa_next_free_vgpr {vgpr}
  .amdhsa_next_free_sgpr {sgpr}
  .amdhsa_accum_offset {(vgpr + 3) // 4 * 4}
  .amdhsa_group_segment_fixed_size 0
  .amdhsa_kernarg_size 120
  .amdhsa_user_sgpr_count 2
  .amdhsa_user_sgpr_kernarg_segment_ptr 1
  .amdhsa_system_sgpr_workgroup_id_x 1
.end_amdhsa_kernel
"""

def main():
    a = Asm()
    a.raw("; @launch kernel=k1_kernel grid=(293,1,1) block=(384,1,1) lds=8192")
    a.raw("; @launch kernel=k2_kernel grid=(436,1,1) block=(256,1,1) lds=106496")
    a.raw("; @launch kernel=k3_kernel grid=(256,1,1) block=(256,1,1) lds=16384")
    a.raw("; @launch kernel=k4_kernel grid=(160,1,1) block=(256,1,1) lds=16384")
    a.raw('.amdgcn_target "amdgcn-amd-amdhsa--gfx950"')
    a.raw(".text")
    gen_k1(a); gen_k2(a); gen_k3(a); gen_k4(a)
    a.raw('.section .rodata,"a"')
    for n, v in (("k1_kernel", 208), ("k2_kernel", 192), ("k3_kernel", 192), ("k4_kernel", 216)):
        a.raw(".p2align 6")
        a.raw(kd(n, v))
    out = sys.argv[1] if len(sys.argv) > 1 else f"cdna_kernels/{NAME}.s"
    open(out, "w").write("\n".join(a.lines) + "\n")

main()
```
